```python
import torch

def _softmax(x, axis=-1):
    return torch.softmax(x, dim=axis)
def _gelu(x):
    return torch.nn.functional.gelu(x, approximate="tanh")
def _silu(x):
    return torch.nn.functional.silu(x)
def _sigmoid(x):
    return torch.sigmoid(x)
def _layernorm(x, axis=-1, eps=1e-5):
    m = x.mean(dim=axis, keepdim=True)
    v = x.var(dim=axis, keepdim=True, unbiased=False)
    return (x - m) / torch.sqrt(v + eps)
def _scatter_add(tgt, idx, src, axis=0):
    return tgt.clone().index_add_(axis, idx, src)
def _segment_sum(src, seg, n):
    out = torch.zeros((n,) + src.shape[1:], dtype=src.dtype)
    return out.index_add_(0, seg, src)
def _pad(x, pw):
    flat = tuple(v for pair in reversed(pw) for v in pair)
    return torch.nn.functional.pad(x, flat)

kernel_name = 'sequential_preLN__sliding_block__geglu_ffn__prompt'

def setup_inputs():

    _w = (lambda a: (lambda t: t.to(torch.bfloat16) if t.is_floating_point() else t)(torch.as_tensor(a)))
    def _A_setup():
        B, S, D = 1, 2048, 512
        return {
            "x": _w((lambda *s: torch.randn(*s, dtype=torch.bfloat16) * 0.05)(B, S, D)),
            "wqkv": _w((lambda *s: torch.randn(*s, dtype=torch.bfloat16) * 0.05)(D, 3 * D)),
            "wo": _w((lambda *s: torch.randn(*s, dtype=torch.bfloat16) * 0.05)(D, D)),
        }
    _A_in = _A_setup()

    def _B_setup():
        B, S, D, F = 1, 2048, 512, 1376
        return {
            "x": _w((lambda *s: torch.randn(*s, dtype=torch.bfloat16) * 0.05)(B, S, D)),
            "w_gate": _w((lambda *s: torch.randn(*s, dtype=torch.bfloat16) * 0.05)(D, F)),
            "w_up": _w((lambda *s: torch.randn(*s, dtype=torch.bfloat16) * 0.05)(D, F)),
            "w_down": _w((lambda *s: torch.randn(*s, dtype=torch.bfloat16) * 0.05)(F, D)),
        }
    _B_in = _B_setup()

    return {
        "A_x": _A_in["x"],
        "A_wqkv": _A_in["wqkv"],
        "A_wo": _A_in["wo"],
        "B_x": _B_in["x"],
        "B_w_gate": _B_in["w_gate"],
        "B_w_up": _B_in["w_up"],
        "B_w_down": _B_in["w_down"],
    }

def reference(A_x, A_wqkv, A_wo, B_x, B_w_gate, B_w_up, B_w_down):
    def _A_ref(x, wqkv, wo):
        B, S, D = x.shape
        H = 32; Dh = D // H; W = 256
        qkv = (lambda x, *d: x.permute(*d))((x @ wqkv).reshape(B, S, 3, H, Dh), 2, 0, 3, 1, 4)
        q, k, v = qkv[0], qkv[1], qkv[2]
        scores = torch.einsum("bhqd,bhkd->bhqk", q, k) * (Dh ** -0.5)
        idx = torch.arange(S)
        mask = (idx[:, None] - idx[None, :] >= 0) & (idx[:, None] - idx[None, :] < W)
        scores = torch.where(mask[None, None], scores, -1e9)
        p = _softmax(scores, axis=-1)
        o = torch.einsum("bhqk,bhkd->bhqd", p, v)
        return (lambda x, *d: x.permute(*d))(o, 0, 2, 1, 3).reshape(B, S, D) @ wo

    def _B_ref(x, w_gate, w_up, w_down):
        return (_gelu(x @ w_gate) * (x @ w_up)) @ w_down

    x = A_x
    h = x + _A_ref(_layernorm(x, axis=-1), A_wqkv, A_wo)
    h2 = h + _B_ref(_layernorm(h, axis=-1), B_w_gate, B_w_up, B_w_down)
    return h2
```

```python
class Asm:
    def __init__(self):
        self.lines = []
        self._uid = 0
    def __call__(self, s, *a):
        for ln in s.split("\n"):
            ln = ln.strip()
            if ln:
                self.lines.append("    " + ln)
    def raw(self, s):
        self.lines.append(s)
    def label(self, name):
        self.lines.append(name + ":")
    def uid(self, p="L"):
        self._uid += 1
        return f"{p}_{self._uid}"
    def comment(self, s):
        self.lines.append("    ; " + s)
    def text(self):
        return "\n".join(self.lines) + "\n"

def vr(b, n=1):
    return f"v{b}" if n == 1 else f"v[{b}:{b+n-1}]"
def ar(b, n=1):
    return f"a{b}" if n == 1 else f"a[{b}:{b+n-1}]"
def sr(b, n=1):
    return f"s{b}" if n == 1 else f"s[{b}:{b+n-1}]"

class Alloc:
    def __init__(self, start, limit, name="v"):
        self.next = start
        self.limit = limit
        self.name = name
        self.hi = start
    def alloc(self, n=1, align=1):
        b = (self.next + align - 1) // align * align
        self.next = b + n
        self.hi = max(self.hi, self.next)
        assert self.next <= self.limit, f"out of {self.name} regs: {self.next} > {self.limit}"
        return b
    def mark(self):
        return self.next
    def reset(self, m):
        self.next = m

def kernel_header(name):
    return f""".globl {name}
.p2align 8
.type {name},@function
{name}:
"""

def kernel_desc(name, vgpr, sgpr, accum=None, wgy=False):
    if accum is None:
        accum = (vgpr + 3) // 4 * 4
    s = f""".amdhsa_kernel {name}
  .amdhsa_next_free_vgpr {vgpr}
  .amdhsa_next_free_sgpr {sgpr}
  .amdhsa_accum_offset {accum}
  .amdhsa_group_segment_fixed_size 0
  .amdhsa_kernarg_size 80
  .amdhsa_user_sgpr_count 2
  .amdhsa_user_sgpr_kernarg_segment_ptr 1
  .amdhsa_system_sgpr_workgroup_id_x 1
"""
    if wgy:
        s += "  .amdhsa_system_sgpr_workgroup_id_y 1\n"
    s += "  .amdhsa_float_denorm_mode_32 3\n"
    s += ".end_amdhsa_kernel\n"
    return s
```

```python
import re

TRANS = ("v_exp_f32", "v_log_f32", "v_rcp_f32", "v_rsq_f32", "v_sqrt_f32", "v_sin_f32", "v_cos_f32")

def parse_reg(tok):
    tok = tok.strip()
    neg = tok.lstrip("-")
    m = re.fullmatch(r"\|?([vsa])(\d+)\|?", neg)
    if m: return [(m.group(1), int(m.group(2)))]
    m = re.fullmatch(r"([vsa])\[(\d+):(\d+)\]", neg)
    if m: return [(m.group(1), i) for i in range(int(m.group(2)), int(m.group(3)) + 1)]
    if neg == "vcc": return [("s", "vcc")]
    if neg == "exec": return [("s", "exec")]
    if neg == "m0": return [("s", "m0")]
    return []

def split_ops(rest):
    ops = []; depth = 0; cur = ""
    for ch in rest:
        if ch == "[": depth += 1
        if ch == "]": depth -= 1
        if ch == "," and depth == 0:
            ops.append(cur.strip()); cur = ""
        else: cur += ch
    if cur.strip(): ops.append(cur.strip())
    return ops

class Inst:
    def __init__(self, text):
        self.text = text
        t = text.split(";")[0].strip()
        self.is_label = t.endswith(":")
        self.op = ""
        self.reads = set(); self.writes = set()
        self.kind = "other"
        self.mfma = None
        if self.is_label or not t or t.startswith("."):
            self.kind = "none"; return
        parts = t.split(None, 1)
        op = parts[0]
        op = re.sub(r"_e32$|_e64$|_dpp$", "", op)
        self.op = op
        rest = parts[1] if len(parts) > 1 else ""
        ops = split_ops(rest)
        clean = []
        for o in ops:
            clean.append(o.split(" ")[0] if not o.startswith("op_sel") else o)
        ops = clean
        R = lambda toks: set(sum([parse_reg(x) for x in toks], []))
        if op.startswith("v_mfma"):
            self.kind = "mfma"
            d, a_, b_, c_ = ops[0], ops[1], ops[2], ops[3]
            self.D = R([d]); self.A = R([a_]); self.B = R([b_]); self.C = R([c_])
            self.writes = set(self.D); self.reads = self.A | self.B | self.C
            self.passes = 8 if "32x32" in op else 4
        elif op.startswith("v_cmp"):
            self.kind = "valu"; self.writes = R([ops[0]]); self.reads = R(ops[1:])
        elif op in ("v_readfirstlane_b32", "v_readlane_b32"):
            self.kind = "valu"; self.writes = R([ops[0]]); self.reads = R(ops[1:]); self.rl = True
        elif op.startswith("v_permlane"):
            self.kind = "valu"; self.writes = R(ops[:2]); self.reads = R(ops[:2]); self.perm = True
        elif op.startswith("v_"):
            self.kind = "valu"
            self.writes = R([ops[0]]); self.reads = R(ops[1:])
            if op in ("v_fmac_f32", "v_dot2c_f32_bf16", "v_pk_fmac_f16"): self.reads |= self.writes
            if op in ("v_add_co_u32", "v_addc_co_u32", "v_sub_co_u32"):
                self.writes |= R([ops[1]])
            if op == "v_cndmask_b32" and len(ops) == 3: self.reads.add(("s", "vcc"))
            if "dpp" in text or "row_" in text or "quad_perm" in text: self.dpp = True
        elif op.startswith("ds_read") or op.startswith("ds_bpermute") or op.startswith("ds_swizzle"):
            self.kind = "ds"; self.writes = R([ops[0]]); self.reads = R(ops[1:])
        elif op.startswith("ds_write"):
            self.kind = "ds"; self.reads = R(ops)
        elif op.startswith("buffer_load") or op.startswith("global_load"):
            self.kind = "vmem"
            if " lds" in t or "_lds_" in op:
                self.reads = R(ops); self.reads.add(("s", "m0")); self.ldsdma = True
            else:
                self.writes = R([ops[0]]); self.reads = R(ops[1:])
        elif op.startswith("buffer_store") or op.startswith("global_store"):
            self.kind = "vmem"; self.reads = R(ops)
            if op.startswith("buffer_store"): self.sdata = R([ops[0]])
            else: self.sdata = R([ops[1]])
            self.wide = op.endswith("x4") or op.endswith("x3")
        elif op.startswith("buffer_atomic") or op.startswith("global_atomic"):
            self.kind = "vmem"; self.reads = R(ops)
        elif op.startswith("buffer_") :
            self.kind = "vmem"
        elif op.startswith("s_"):
            self.kind = "salu"
            if op.startswith("s_cmp") or op.startswith("s_cbranch") or op in ("s_branch", "s_barrier", "s_waitcnt", "s_nop", "s_endpgm", "s_sleep", "s_setprio", "s_bitcmp0_b32", "s_bitcmp1_b32"):
                self.reads = R(ops)
            else:
                self.writes = R([ops[0]]) if ops else set(); self.reads = R(ops[1:])
                if "saveexec" in op: self.writes.add(("s", "exec"))
        self.states = 1
        if op == "s_nop": self.states = int(ops[0]) + 1

def vonly(s): return {r for r in s if r[0] in "va"}
def sonly(s): return {r for r in s if r[0] == "s"}

def required(prod, cons):
    need = 0
    if prod.kind == "valu":
        pw = vonly(prod.writes); ps = sonly(prod.writes)
        if cons.kind == "mfma" and pw & cons.reads: need = max(need, 2)
        if cons.kind == "valu":
            if prod.op in TRANS and cons.op not in TRANS and pw & cons.reads: need = max(need, 1)
            if getattr(cons, "perm", False) and pw & cons.reads: need = max(need, 2)
            if getattr(cons, "rl", False) and pw & cons.reads: need = max(need, 1)
            if getattr(cons, "dpp", False) and pw & cons.reads: need = max(need, 2)
            if ps & sonly(cons.reads): need = max(need, 2)
            if getattr(cons, "rl", False) and ps & sonly(cons.reads): need = max(need, 4)
        if cons.kind == "vmem" and ps & sonly(cons.reads): need = max(need, 5)
        if cons.kind == "salu" and ps & sonly(cons.reads): need = max(need, 1)
    if prod.kind == "mfma":
        D = prod.D
        big = 12 if prod.passes == 8 else 8
        if cons.kind == "mfma":
            if D & (cons.A | cons.B): need = max(need, big)
            if D & cons.C:
                if not (cons.C == D and cons.passes == prod.passes): need = max(need, big - 2)
            if D & cons.D and not (cons.C == D):
                need = max(need, big - 2)
        elif cons.kind in ("valu", "ds", "vmem"):
            if D & (cons.reads | cons.writes): need = max(need, big)
        if cons.kind == "valu" and prod.C & vonly(cons.writes) and not (D & cons.writes):
            need = max(need, 7 if prod.passes == 8 else 3)
    if prod.kind == "salu":
        if ("s", "m0") in prod.writes and getattr(cons, "ldsdma", False): need = max(need, 1)
    if prod.kind == "vmem" and getattr(prod, "wide", False):
        if cons.kind == "valu" and prod.sdata & vonly(cons.writes): need = max(need, 2)
        elif (cons.kind in ("ds", "vmem", "mfma")) and prod.sdata & vonly(cons.writes): need = max(need, 1)
    return need

def fix(lines, window=24, insert=True, log=None):
    out = []; hist = []
    n_ins = 0
    for ln in lines:
        ins = Inst(ln)
        if ins.kind == "none":
            out.append(ln); continue
        dist = 0; deficit = 0; why = None
        for p in reversed(hist[-window:]):
            r = required(p, ins)
            if r > dist and r - dist > deficit:
                deficit = r - dist; why = p
            dist += p.states
            if dist > 24: break
        if deficit > 0:
            if not insert:
                raise AssertionError(f"hazard: '{why.text.strip()}' -> '{ln.strip()}' short by {deficit}")
            if log is not None: log.append((why.text.strip(), ln.strip(), deficit))
            k = deficit
            while k > 0:
                m = min(k, 16)
                nop = Inst(f"s_nop {m-1}")
                out.append(f"    s_nop {m-1}")
                hist.append(nop); k -= m
            n_ins += 1
        out.append(ln); hist.append(ins)
    return out

def check_loops(lines):
    labels = {}
    for i, ln in enumerate(lines):
        t = ln.split(";")[0].strip()
        if t.endswith(":"): labels[t[:-1]] = i
    probs = []
    for i, ln in enumerate(lines):
        t = ln.split(";")[0].strip()
        m = re.match(r"s_c?branch\w*\s+(\S+)", t)
        if m and m.group(1) in labels:
            j = labels[m.group(1)]
            if j < i:
                tail = lines[max(j, i - 40):i + 1]; head = lines[j:min(i, j + 40)]
                try: fix(tail + head, insert=False)
                except AssertionError as e: probs.append(str(e))
            else:
                tail = lines[max(0, i - 40):i + 1]; head = lines[j:j + 40]
                try: fix(tail + head, insert=False)
                except AssertionError as e: probs.append("fwd: " + str(e))
    return probs
```

```python
import sys, math
from asmlib import *
import hazard

NAME = "sequential_preLN__sliding_block__geglu_ffn__prompt"
WS_Q = 0x000000
WS_K = 0x200000
WS_V = 0x400000
WS_O = 0x600000
WS_H = 0x800000
WS_G = 0xA00000
GSTRIDE = 2816
WS_USED = WS_G + 2048 * GSTRIDE
QSCALE = 0.25 * math.log2(math.e)

def f32bits(x):
    import struct
    return struct.unpack("<I", struct.pack("<f", x))[0]
def hexf(x): return hex(f32bits(x))

def srd(a, d, base, size, off=None):
    if off:
        a(f"s_add_u32 s{d}, s{base}, {hex(off)}")
        a(f"s_addc_u32 s{d+1}, s{base+1}, 0")
    else:
        a(f"s_mov_b32 s{d}, s{base}")
        a(f"s_mov_b32 s{d+1}, s{base+1}")
    a(f"s_mov_b32 s{d+2}, {hex(size)}")
    a(f"s_mov_b32 s{d+3}, 0x20000")

def dma(a, voff, srd_, soff, m0val, extra=""):
    if isinstance(m0val, tuple):
        a(f"s_add_u32 m0, s{m0val[0]}, {m0val[1]}")
    else:
        a(f"s_mov_b32 m0, {m0val}")
    if isinstance(soff, tuple):
        a(f"s_add_u32 s{soff[2]}, s{soff[0]}, {soff[1]}")
        so = f"s{soff[2]}"
    else:
        a("s_nop 0")
        so = soff
    a(f"buffer_load_dwordx4 v{voff}, s[{srd_}:{srd_+3}], {so} offen lds{extra}")

def loader_schedule(a, NC, NS, n, issue):
    issued = 0
    for c in range(min(NS, NC)):
        issue(c); issued = c + 1
    a(f"s_waitcnt vmcnt({(issued - 1) * n})")
    a("s_barrier")
    for c in range(1, NC):
        nxt = c - 2 + NS
        if c >= 2 and nxt < NC:
            issue(nxt); issued = nxt + 1
        a(f"s_waitcnt vmcnt({(issued - 1 - c) * n})")
        a("s_barrier")

def xhalf_reduce(a, val, tmp):
    a(f"v_mov_b32 v{tmp}, v{val}")
    a("s_nop 1")
    a(f"v_permlane32_swap_b32 v{val}, v{tmp}")
    a(f"v_add_f32 v{val}, v{val}, v{tmp}")

def ln_finalize(a, vsum, vsq, va, vb, t0, t1):
    a(f"v_mul_f32 v{t0}, {hexf(1.0/512)}, v{vsum}")
    a(f"v_mul_f32 v{t1}, {hexf(1.0/512)}, v{vsq}")
    a(f"v_fma_f32 v{t1}, -v{t0}, v{t0}, v{t1}")
    a(f"v_max_f32 v{t1}, 0, v{t1}")
    a(f"v_add_f32 v{t1}, {hexf(1e-5)}, v{t1}")
    a(f"v_rsq_f32 v{va}, v{t1}")
    a("s_nop 0")
    a(f"v_mul_f32 v{vb}, v{t0}, v{va}")
    a(f"v_sub_f32 v{vb}, 0, v{vb}")

def gen_k1(name):
    a = Asm()
    NC, NS, STAGE = 8, 4, 32768
    SCR = NS * STAGE
    LDS = SCR + 4096
    a.raw(kernel_header(name))
    a("s_cmp_ge_u32 s2, 256")
    a(f"s_cbranch_scc1 {name}_done")
    a("s_load_dwordx4 s[4:7], s[0:1], 0")
    a("s_load_dwordx2 s[8:9], s[0:1], 72")
    a("v_lshrrev_b32 v1, 6, v0")
    a("v_and_b32 v0, 63, v0")
    a("v_readfirstlane_b32 s3, v1")
    a("s_and_b32 s10, s2, 7")
    a("s_lshr_b32 s11, s2, 3")
    a("s_lshr_b32 s12, s10, 1")
    a("s_lshl_b32 s12, s12, 3")
    a("s_lshr_b32 s13, s11, 2")
    a("s_add_u32 s12, s12, s13")
    a("s_and_b32 s13, s10, 1")
    a("s_lshl_b32 s13, s13, 2")
    a("s_and_b32 s14, s11, 3")
    a("s_add_u32 s13, s13, s14")
    a("s_cmp_ge_u32 s3, 4")
    a(f"s_cbranch_scc0 {name}_compute")
    a("s_sub_u32 s3, s3, 4")
    a("v_lshrrev_b32 v4, 3, v0")
    a("v_and_b32 v5, 7, v0")
    a("v_lshrrev_b32 v6, 4, v0")
    a("s_and_b32 s14, s3, 1")
    a("s_lshl_b32 s14, s14, 2")
    a("v_xor_b32 v7, v5, v6")
    a("v_xor_b32 v7, s14, v7")
    a("v_lshlrev_b32 v7, 4, v7")
    a("v_lshl_add_u32 v2, v4, 10, v7")
    a("v_and_b32 v6, 1, v6")
    a("v_lshlrev_b32 v6, 2, v6")
    a("v_xor_b32 v7, v5, v6")
    a("v_lshlrev_b32 v7, 4, v7")
    a("v_mul_u32_u24 v3, 3072, v4")
    a("v_add_u32 v3, v3, v7")
    a("s_lshl_b32 s20, s12, 16")
    a("s_lshl_b32 s21, s3, 13")
    a("s_add_u32 s20, s20, s21")
    a("s_mul_i32 s21, s3, 24576")
    a("s_lshl_b32 s22, s13, 7")
    a("s_add_u32 s21, s21, s22")
    a("s_lshl_b32 s22, s3, 10")
    a("s_waitcnt lgkmcnt(0)")
    srd(a, 24, 4, 2048 * 1024)
    srd(a, 28, 6, 512 * 3072)
    def issue(c):
        st = (c % NS) * STAGE
        for jj in range(2):
            dma(a, 2, 24, (20, c * 128 + jj * 32768, 23), (22, st + jj * 4096))
        for seg in range(3):
            for jj in range(2):
                dma(a, 3, 28, (21, c * 64 * 3072 + jj * 32 * 3072 + seg * 1024, 23), (22, st + 8192 * (1 + seg) + jj * 4096))
    loader_schedule(a, NC, NS, 8, issue)
    a("s_endpgm")
    a.label(f"{name}_compute")
    V = Alloc(1, 256)
    acc = [V.alloc(16, 4) for _ in range(3)]
    XF = [V.alloc(4, 4) for _ in range(2)]
    WF = [[V.alloc(4, 4) for _ in range(3)] for _ in range(2)]
    xa = [V.alloc() for _ in range(4)]
    wa = V.alloc()
    vsum = V.alloc(2, 2); vsq = vsum + 1
    cs = [V.alloc() for _ in range(3)]
    ones = V.alloc()
    t = [V.alloc() for _ in range(8)]
    a("s_and_b32 s14, s3, 1")
    a("s_lshr_b32 s15, s3, 1")
    a(f"v_and_b32 v{t[0]}, 31, v0")
    a(f"v_lshrrev_b32 v{t[1]}, 5, v0")
    a(f"v_bfe_u32 v{t[2]}, v0, 1, 3")
    a(f"v_xor_b32 v{t[2]}, v{t[2]}, v{t[1]}")
    a(f"v_lshlrev_b32 v{t[2]}, 4, v{t[2]}")
    a(f"s_lshl_b32 s16, s14, 12")
    a(f"v_lshl_add_u32 v{t[3]}, v{t[0]}, 7, v{t[2]}")
    a(f"v_add_u32 v{xa[0]}, s16, v{t[3]}")
    for s in range(1, 4):
        a(f"v_xor_b32 v{xa[s]}, {s*32}, v{xa[0]}")
    a(f"v_bfe_u32 v{t[2]}, v0, 2, 2")
    a(f"v_lshl_add_u32 v{t[3]}, v{t[1]}, 3, v{t[2]}")
    a(f"v_bfe_u32 v{t[4]}, v0, 4, 1")
    a(f"v_bfe_u32 v{t[5]}, v0, 1, 1")
    a(f"v_lshl_add_u32 v{t[4]}, v{t[4]}, 1, v{t[5]}")
    a(f"s_lshl_b32 s16, s15, 2")
    a(f"v_add_u32 v{t[4]}, s16, v{t[4]}")
    a(f"v_bfe_u32 v{t[5]}, v0, 3, 1")
    a(f"v_lshlrev_b32 v{t[5]}, 2, v{t[5]}")
    a(f"v_xor_b32 v{t[4]}, v{t[4]}, v{t[5]}")
    a(f"v_lshlrev_b32 v{t[4]}, 4, v{t[4]}")
    a(f"v_lshl_add_u32 v{t[4]}, v{t[3]}, 7, v{t[4]}")
    a(f"v_and_b32 v{t[5]}, 1, v0")
    a(f"v_lshl_add_u32 v{wa}, v{t[5]}, 3, v{t[4]}")
    for r in range(3):
        for i in range(16): a(f"v_mov_b32 v{acc[r]+i}, 0")
    a(f"v_mov_b32 v{vsum}, 0")
    a(f"v_mov_b32 v{vsq}, 0")
    for r in range(3): a(f"v_mov_b32 v{cs[r]}, 0")
    a(f"v_mov_b32 v{ones}, 0x3f803f80")
    a("s_mov_b32 s17, 0")
    a("s_mov_b32 s18, 0")
    def reads(setn, s):
        a(f"ds_read_b128 {vr(XF[setn],4)}, v{xa[s]}")
        for seg in range(3):
            for tt in range(2):
                a(f"ds_read_b64_tr_b16 {vr(WF[setn][seg]+2*tt,2)}, v{wa} offset:{8192*(1+seg)+s*2048+tt*512}")
    a("s_barrier")
    reads(0, 0)
    a.label(f"{name}_loop")
    for s in range(4):
        cur = s & 1; nxt = cur ^ 1
        a("s_waitcnt lgkmcnt(0)")
        if s < 3:
            reads(nxt, s + 1)
        else:
            a(f"s_cmp_eq_u32 s17, {NC-1}")
            a(f"s_cbranch_scc1 {name}_noread")
            a("s_barrier")
            a(f"s_add_u32 s19, s18, {STAGE}")
            a(f"s_cmp_eq_u32 s19, {NS*STAGE}")
            a(f"s_cselect_b32 s19, 0, s19")
            a(f"s_sub_u32 s16, s19, s18")
            a(f"s_mov_b32 s18, s19")
            for r in xa + [wa]:
                a(f"v_add_u32 v{r}, s16, v{r}")
            reads(nxt, 0)
            a.label(f"{name}_noread")
        lx = a.uid(name + "_sx"); lc = a.uid(name + "_sc")
        a(f"s_cmp_eq_u32 s15, {s&1}")
        a(f"s_cbranch_scc0 {lx}")
        for i in range(4):
            a(f"v_dot2c_f32_bf16 v{vsum}, v{XF[cur]+i}, v{ones}")
            a(f"v_dot2c_f32_bf16 v{vsq}, v{XF[cur]+i}, v{XF[cur]+i}")
        a.label(lx)
        a(f"s_cmp_eq_u32 s14, {s&1}")
        a(f"s_cbranch_scc0 {lc}")
        for seg in range(3):
            for i in range(4):
                a(f"v_dot2c_f32_bf16 v{cs[seg]}, v{WF[cur][seg]+i}, v{ones}")
        a.label(lc)
        for seg in range(3):
            a(f"v_mfma_f32_32x32x16_bf16 {vr(acc[seg],16)}, {vr(WF[cur][seg],4)}, {vr(XF[cur],4)}, {vr(acc[seg],16)}")
    a("s_add_u32 s17, s17, 1")
    a(f"s_cmp_lt_u32 s17, {NC}")
    a(f"s_cbranch_scc1 {name}_loop")
    for r in (vsum, vsq, cs[0], cs[1], cs[2]):
        xhalf_reduce(a, r, t[7])
    a(f"v_and_b32 v{t[0]}, 31, v0")
    a(f"s_lshl_b32 s16, s3, 8")
    a(f"s_add_u32 s16, s16, {SCR}")
    a(f"v_lshl_add_u32 v{t[2]}, v{t[0]}, 3, s16")
    a(f"ds_write_b64 v{t[2]}, {vr(vsum,2)}")
    a(f"s_mul_i32 s16, s3, 384")
    a(f"s_add_u32 s16, s16, {SCR+1024}")
    a(f"v_lshl_add_u32 v{t[3]}, v{t[0]}, 2, s16")
    for seg in range(3):
        a(f"ds_write_b32 v{t[3]}, v{cs[seg]} offset:{seg*128}")
    a("s_waitcnt lgkmcnt(0)")
    a("s_barrier")
    a(f"s_xor_b32 s16, s3, 2")
    a(f"s_lshl_b32 s16, s16, 8")
    a(f"s_add_u32 s16, s16, {SCR}")
    a(f"v_lshl_add_u32 v{t[2]}, v{t[0]}, 3, s16")
    p2 = XF[0]
    a(f"ds_read_b64 {vr(p2,2)}, v{t[2]}")
    a(f"s_xor_b32 s16, s3, 1")
    a(f"s_mul_i32 s16, s16, 384")
    a(f"s_add_u32 s16, s16, {SCR+1024}")
    a(f"v_lshl_add_u32 v{t[4]}, v{t[0]}, 2, s16")
    pc = XF[1]
    for seg in range(3):
        a(f"ds_read_b32 v{pc+seg}, v{t[4]} offset:{seg*128}")
    a("s_waitcnt lgkmcnt(0)")
    a(f"v_add_f32 v{vsum}, v{vsum}, v{p2}")
    a(f"v_add_f32 v{vsq}, v{vsq}, v{p2+1}")
    for seg in range(3):
        a(f"v_add_f32 v{cs[seg]}, v{cs[seg]}, v{pc+seg}")
    a(f"s_mul_i32 s16, s3, 384")
    a(f"s_add_u32 s16, s16, {SCR+2560}")
    a(f"v_lshl_add_u32 v{t[3]}, v{t[0]}, 2, s16")
    for seg in range(3):
        a(f"ds_write_b32 v{t[3]}, v{cs[seg]} offset:{seg*128}")
    va = V.alloc(2, 2); vb = V.alloc(2, 2); vaq = V.alloc(2, 2); vbq = V.alloc(2, 2)
    ln_finalize(a, vsum, vsq, va, vb, t[5], t[6])
    a(f"v_mul_f32 v{vaq}, {hexf(QSCALE)}, v{va}")
    a(f"v_mul_f32 v{vbq}, {hexf(QSCALE)}, v{vb}")
    a(f"v_lshrrev_b32 v{t[1]}, 5, v0")
    a(f"v_lshl_add_u32 v{t[4]}, v{t[1]}, 4, s16")
    CT = V.alloc(16, 4)
    PK = V.alloc(8, 4)
    a(f"v_lshlrev_b32 v{t[5]}, 5, v{t[0]}")
    a(f"v_lshl_add_u32 v{t[5]}, v{t[1]}, 4, v{t[5]}")
    srd(a, 24, 8, 3 * 0x200000)
    a("s_lshl_b32 s20, s13, 2")
    a("s_lshl_b32 s21, s15, 1")
    a("s_add_u32 s20, s20, s21")
    a("s_lshl_b32 s20, s20, 16")
    a("s_lshl_b32 s21, s12, 11")
    a("s_add_u32 s20, s20, s21")
    a("s_lshl_b32 s21, s14, 10")
    a("s_add_u32 s20, s20, s21")
    a("s_waitcnt lgkmcnt(0)")
    for seg in range(3):
        for g in range(4):
            a(f"ds_read_b128 {vr(CT+4*g,4)}, v{t[4]} offset:{seg*128+g*32}")
        a("s_waitcnt lgkmcnt(0)")
        A_, B_ = (vaq, vbq) if seg == 0 else (va, vb)
        for i in range(0, 16, 2):
            a(f"v_pk_mul_f32 {vr(CT+i,2)}, {vr(CT+i,2)}, {vr(B_,2)} op_sel_hi:[1,0]")
        for i in range(0, 16, 2):
            a(f"v_pk_fma_f32 {vr(CT+i,2)}, {vr(acc[seg]+i,2)}, {vr(A_,2)}, {vr(CT+i,2)} op_sel_hi:[1,0,1]")
        for i in range(8):
            a(f"v_cvt_pk_bf16_f32 v{PK+i}, v{CT+2*i}, v{CT+2*i+1}")
        a(f"s_add_u32 s21, s20, {seg*0x200000}")
        a(f"buffer_store_dwordx4 {vr(PK,4)}, v{t[5]}, s[24:27], s21 offen")
        a(f"s_add_u32 s21, s21, 65536")
        a(f"buffer_store_dwordx4 {vr(PK+4,4)}, v{t[5]}, s[24:27], s21 offen")
    a(f"{name}_done:")
    a("s_endpgm")
    return a, dict(vgpr=V.hi, sgpr=40, block=512, lds=LDS, grid=256)

def gen_k2(name):
    a = Asm()
    KOFF, VOFF = 0, 40960
    LDS = 81920
    NEG = -1e30
    a.raw(kernel_header(name))
    a("s_cmp_ge_u32 s2, 256")
    a(f"s_cbranch_scc1 {name}_done")
    a("s_load_dwordx2 s[8:9], s[0:1], 72")
    a("v_lshrrev_b32 v1, 6, v0")
    a("v_and_b32 v0, 63, v0")
    a("v_readfirstlane_b32 s3, v1")
    a("s_and_b32 s13, s2, 7")
    a("s_lshr_b32 s12, s2, 3")
    a("s_and_b32 s14, s3, 1")
    a("s_lshr_b32 s15, s3, 1")
    a("s_lshl_b32 s16, s13, 2")
    a("s_add_u32 s16, s16, s15")
    a("s_lshl_b32 s17, s12, 1")
    V = Alloc(1, 256)
    t = [V.alloc() for _ in range(8)]
    kvo = V.alloc(); vvo = V.alloc()
    a(f"v_lshrrev_b32 v{t[0]}, 1, v0")
    a(f"v_and_b32 v{t[1]}, 1, v0")
    a(f"v_bfe_u32 v{t[2]}, v0, 4, 1")
    a(f"v_xor_b32 v{t[2]}, v{t[2]}, v{t[1]}")
    a(f"v_lshlrev_b32 v{t[2]}, 4, v{t[2]}")
    a(f"v_lshl_add_u32 v{kvo}, v{t[0]}, 5, v{t[2]}")
    a(f"v_bfe_u32 v{t[2]}, v0, 5, 1")
    a(f"v_lshlrev_b32 v{t[2]}, 2, v{t[2]}")
    a(f"v_xor_b32 v{t[2]}, v{t[2]}, v{t[0]}")
    a(f"v_lshlrev_b32 v{t[1]}, 4, v{t[1]}")
    a(f"v_lshl_add_u32 v{vvo}, v{t[2]}, 5, v{t[1]}")
    a("s_waitcnt lgkmcnt(0)")
    srd(a, 24, 8, 3 * 0x200000)
    QF = V.alloc(4, 4)
    a("s_add_u32 s18, s17, s14")
    a("s_lshl_b32 s19, s16, 16")
    a("s_lshl_b32 s20, s18, 10")
    a("s_add_u32 s20, s20, s19")
    a(f"v_and_b32 v{t[0]}, 31, v0")
    a(f"v_lshrrev_b32 v{t[1]}, 5, v0")
    a(f"v_lshlrev_b32 v{t[2]}, 5, v{t[0]}")
    a(f"v_lshl_add_u32 v{t[2]}, v{t[1]}, 4, v{t[2]}")
    a(f"buffer_load_dwordx4 {vr(QF,4)}, v{t[2]}, s[24:27], s20 offen")
    a("s_mul_i32 s21, s14, 5")
    a("s_mul_i32 s22, s15, 10240")
    a("s_lshl_b32 s23, s21, 10")
    a("s_add_u32 s22, s22, s23")
    a("s_add_u32 s21, s21, s17")
    a("s_sub_u32 s21, s21, 8")
    for which, vo, goff, loff in ((0, kvo, WS_K, KOFF), (1, vvo, WS_V, VOFF)):
        for j in range(5):
            a(f"s_add_i32 s28, s21, {j}")
            a(f"s_max_i32 s28, s28, 0")
            a(f"s_lshl_b32 s28, s28, 10")
            a(f"s_add_u32 s28, s28, s19")
            a(f"s_add_u32 s28, s28, {hex(goff)}")
            a(f"s_add_u32 m0, s22, {loff + j*1024}")
            a("s_nop 0")
            a(f"buffer_load_dwordx4 v{vo}, s[24:27], s28 offen lds")
    a("s_sub_i32 s29, 8, s18")
    a("s_max_i32 s29, s29, 0")
    ka = V.alloc(); vaddr = V.alloc()
    a("s_mul_i32 s30, s15, 10240")
    a("s_lshl_b32 s31, s14, 10")
    a("s_add_u32 s30, s30, s31")
    a(f"v_bfe_u32 v{t[3]}, v0, 3, 1")
    a(f"v_xor_b32 v{t[3]}, v{t[3]}, v{t[1]}")
    a(f"v_lshlrev_b32 v{t[3]}, 4, v{t[3]}")
    a(f"v_lshl_add_u32 v{t[3]}, v{t[0]}, 5, v{t[3]}")
    a(f"v_add_u32 v{ka}, s30, v{t[3]}")
    a(f"v_bfe_u32 v{t[3]}, v0, 4, 1")
    a(f"v_bfe_u32 v{t[4]}, v0, 2, 2")
    a(f"v_lshl_add_u32 v{t[4]}, v{t[1]}, 2, v{t[4]}")
    a(f"v_lshlrev_b32 v{t[5]}, 2, v{t[3]}")
    a(f"v_xor_b32 v{t[4]}, v{t[4]}, v{t[5]}")
    a(f"v_lshl_add_u32 v{t[4]}, v{t[3]}, 4, v{t[4]}")
    a(f"v_and_b32 v{t[5]}, 3, v0")
    a(f"v_lshlrev_b32 v{t[5]}, 3, v{t[5]}")
    a(f"v_lshl_add_u32 v{t[4]}, v{t[4]}, 5, v{t[5]}")
    a(f"s_add_u32 s31, s30, {VOFF}")
    a(f"v_add_u32 v{vaddr}, s31, v{t[4]}")
    SM = 40
    for r in range(16):
        m = 0
        for l in range(64):
            q = l & 31; hh = l >> 5
            kk = (r & 3) + 8 * (r >> 2) + 4 * hh
            if kk <= q: m |= (1 << l)
        a(f"s_mov_b32 s{SM+2*r}, {hex(m & 0xffffffff)}")
        a(f"s_mov_b32 s{SM+2*r+1}, {hex(m >> 32)}")
    PM = V.alloc(8)
    for i in range(8):
        a(f"v_mov_b32 v{t[6]}, 0")
        a(f"v_mov_b32 v{t[7]}, 0xffff")
        a(f"v_cndmask_b32_e64 v{PM+i}, v{t[6]}, v{t[7]}, s[{SM+4*i}:{SM+4*i+1}]")
        a(f"v_mov_b32 v{t[7]}, 0xffff0000")
        a(f"v_cndmask_b32_e64 v{t[7]}, v{t[6]}, v{t[7]}, s[{SM+4*i+2}:{SM+4*i+3}]")
        a(f"v_or_b32 v{PM+i}, v{PM+i}, v{t[7]}")
    KF = [V.alloc(4, 4) for _ in range(2)]
    S = [V.alloc(16, 4) for _ in range(2)]
    SMG = V.alloc(16, 4)
    CT = V.alloc(16, 4)
    vm = V.alloc(2, 2)
    a(f"s_cmp_gt_u32 s29, 0")
    a(f"s_cselect_b32 s32, {hexf(NEG)}, 0")
    for i in range(16): a(f"v_mov_b32 v{CT+i}, s32")
    a(f"v_mov_b32 v{vm}, {hexf(NEG)}")
    a("s_waitcnt vmcnt(5)")
    a("s_barrier")
    switches = []
    def switch_ct(j, valsrc, tag):
        lab = f"{name}_{tag}{j}"
        a(f"s_cmp_eq_u32 s29, {j}")
        a(f"s_cbranch_scc1 {lab}")
        a.label(lab + "_back")
        switches.append((lab, valsrc))
    a(f"ds_read_b128 {vr(KF[0],4)}, v{ka} offset:0")
    a(f"ds_read_b128 {vr(KF[1],4)}, v{ka} offset:{8*1024}")
    a("s_waitcnt lgkmcnt(0)")
    a(f"v_mfma_f32_32x32x16_bf16 {vr(S[0],16)}, {vr(KF[0],4)}, {vr(QF,4)}, {vr(CT,16)}")
    a(f"v_mfma_f32_32x32x16_bf16 {vr(S[1],16)}, {vr(KF[1],4)}, {vr(QF,4)}, 0")
    a(f"ds_read_b128 {vr(KF[0],4)}, v{ka} offset:{1*1024}")
    a(f"ds_read_b128 {vr(KF[1],4)}, v{ka} offset:{2*1024}")
    for r in range(16):
        a(f"v_cndmask_b32_e64 v{SMG+r}, v{S[0]+r}, v{S[1]+r}, s[{SM+2*r}:{SM+2*r+1}]")
    def maxtile(T):
        for i in range(0, 16, 2):
            a(f"v_max3_f32 v{vm}, v{vm}, v{T+i}, v{T+i+1}")
    prev = SMG
    for j in range(1, 8):
        b = (j - 1) & 1
        switch_ct(j, "0", "p1s")
        a(f"s_waitcnt lgkmcnt({1 if j < 7 else 0})")
        a(f"v_mfma_f32_32x32x16_bf16 {vr(S[b],16)}, {vr(KF[b],4)}, {vr(QF,4)}, {vr(CT,16)}")
        if j + 2 <= 7:
            a(f"ds_read_b128 {vr(KF[b],4)}, v{ka} offset:{(j+2)*1024}")
        maxtile(prev)
        prev = S[b]
    maxtile(prev)
    a(f"v_mov_b32 v{t[0]}, v{vm}")
    a("s_nop 1")
    a(f"v_permlane32_swap_b32 v{vm}, v{t[0]}")
    a(f"v_max_f32 v{vm}, v{vm}, v{t[0]}")
    a(f"v_sub_f32 v{vm}, 0, v{vm}")
    D1 = V.alloc(16, 4); D2 = V.alloc(16, 4); DL = V.alloc(16, 4)
    P = [V.alloc(8, 4) for _ in range(2)]
    VF = [V.alloc(4, 4) for _ in range(2)]
    ON = V.alloc(4, 4)
    for i in range(4): a(f"v_mov_b32 v{ON+i}, 0x3f803f80")
    for base in (D1, D2, DL):
        for i in range(16): a(f"v_mov_b32 v{base+i}, 0")
    a(f"s_cmp_gt_u32 s29, 1")
    a(f"s_cselect_b64 s[34:35], -1, 0")
    a(f"v_mov_b32 v{t[1]}, {hexf(NEG)}")
    a(f"v_cndmask_b32_e64 v{t[2]}, v{vm}, v{t[1]}, s[34:35]")
    for i in range(16): a(f"v_mov_b32 v{CT+i}, v{t[2]}")
    a("s_waitcnt vmcnt(0)")
    a("s_barrier")
    def vread(b, j):
        a(f"ds_read_b64_tr_b16 {vr(VF[b],2)}, v{vaddr} offset:{j*1024}")
        a(f"ds_read_b64_tr_b16 {vr(VF[b]+2,2)}, v{vaddr} offset:{j*1024+256}")
    def expcvt(T, Pd):
        for i in range(16): a(f"v_exp_f32 v{T+i}, v{T+i}")
        for i in range(8): a(f"v_cvt_pk_bf16_f32 v{Pd+i}, v{T+2*i}, v{T+2*i+1}")
    def pv(b, Pd, withsum=True):
        a(f"v_mfma_f32_32x32x16_bf16 {vr(D1,16)}, {vr(VF[b],4)}, {vr(Pd,4)}, {vr(D1,16)}")
        a(f"v_mfma_f32_32x32x16_bf16 {vr(D2,16)}, {vr(VF[b],4)}, {vr(Pd+4,4)}, {vr(D2,16)}")
        if withsum:
            a(f"v_mfma_f32_32x32x16_bf16 {vr(DL,16)}, {vr(ON,4)}, {vr(Pd,4)}, {vr(DL,16)}")
            a(f"v_mfma_f32_32x32x16_bf16 {vr(DL,16)}, {vr(ON,4)}, {vr(Pd+4,4)}, {vr(DL,16)}")
    vread(0, 0); vread(1, 8)
    a(f"ds_read_b128 {vr(KF[0],4)}, v{ka} offset:{1*1024}")
    a(f"ds_read_b128 {vr(KF[1],4)}, v{ka} offset:{2*1024}")
    for i in range(0, 16, 2):
        a(f"v_pk_add_f32 {vr(SMG+i,2)}, {vr(SMG+i,2)}, {vr(vm,2)} op_sel_hi:[1,0]")
    expcvt(SMG, P[0])
    for i in range(8): a(f"v_and_b32 v{P[1]+i}, v{P[0]+i}, v{PM+i}")
    a(f"v_mfma_f32_32x32x16_bf16 {vr(DL,16)}, {vr(ON,4)}, {vr(P[0],4)}, {vr(DL,16)}")
    a(f"v_mfma_f32_32x32x16_bf16 {vr(DL,16)}, {vr(ON,4)}, {vr(P[0]+4,4)}, {vr(DL,16)}")
    PO = SMG
    for i in range(8): a(f"v_xor_b32 v{PO+i}, v{P[0]+i}, v{P[1]+i}")
    a("s_waitcnt lgkmcnt(2)")
    pv(1, P[1], False)
    pv(0, PO, False)
    for j in range(1, 8):
        b = (j - 1) & 1
        switch_ct(j, f"v{vm}", "p2s") if j >= 2 else None
        a(f"s_waitcnt lgkmcnt({1 if j < 7 else 0})")
        a(f"v_mfma_f32_32x32x16_bf16 {vr(S[b],16)}, {vr(KF[b],4)}, {vr(QF,4)}, {vr(CT,16)}")
        vread(b, j)
        if j + 2 <= 7:
            a(f"ds_read_b128 {vr(KF[b],4)}, v{ka} offset:{(j+2)*1024}")
        expcvt(S[b], P[b])
        a(f"s_waitcnt lgkmcnt({1 if j + 2 <= 7 else 0})")
        pv(b, P[b])
    a(f"v_rcp_f32 v{t[0]}, v{DL}")
    for i in range(8): a(f"v_add_f32 v{D1+i}, v{D1+i}, v{D2+8+i}")
    for i in range(8): a(f"v_mul_f32 v{D1+i}, v{D1+i}, v{t[0]}")
    for i in range(4): a(f"v_cvt_pk_bf16_f32 v{P[0]+i}, v{D1+2*i}, v{D1+2*i+1}")
    a(f"v_and_b32 v{t[1]}, 31, v0")
    a(f"v_lshrrev_b32 v{t[2]}, 5, v0")
    a(f"v_lshlrev_b32 v{t[1]}, 10, v{t[1]}")
    a(f"v_lshl_add_u32 v{t[1]}, v{t[2]}, 4, v{t[1]}")
    srd(a, 24, 8, 0x200000, WS_O)
    a("s_lshl_b32 s20, s18, 15")
    a("s_lshl_b32 s21, s16, 5")
    a("s_add_u32 s20, s20, s21")
    a(f"buffer_store_dwordx4 {vr(P[0],4)}, v{t[1]}, s[24:27], s20 offen")
    a(f"{name}_done:")
    a("s_endpgm")
    for lab, val in switches:
        a.label(lab)
        for i in range(16): a(f"v_mov_b32 v{CT+i}, {val}")
        a(f"s_branch {lab}_back")
    return a, dict(vgpr=V.hi, sgpr=80, block=512, lds=LDS, grid=256)

def gen_k35(name, which):
    a = Asm()
    if which == 3:
        NC, NK16, XOFF, XSTR, XSIZE, WARG, WSIZE, perm = 8, 32, WS_O, 1024, 0x200000, 16, 512 * 1024, False
    else:
        NC, NK16, XOFF, XSTR, XSIZE, WARG, WSIZE, perm = 22, 86, WS_G, GSTRIDE, 2048 * GSTRIDE, 48, 1376 * 1024, True
    NS, STAGE = 8, 16384
    LDS = NS * STAGE
    a.raw(kernel_header(name))
    a("s_cmp_ge_u32 s2, 256")
    a(f"s_cbranch_scc1 {name}_done")
    a(f"s_load_dwordx2 s[6:7], s[0:1], {WARG}")
    a("s_load_dwordx2 s[8:9], s[0:1], 72")
    a("s_load_dwordx2 s[4:5], s[0:1], 0")
    a("s_load_dwordx2 s[10:11], s[0:1], 56")
    a("v_lshrrev_b32 v1, 6, v0")
    a("v_and_b32 v0, 63, v0")
    a("v_readfirstlane_b32 s3, v1")
    a("s_and_b32 s12, s2, 7")
    a("s_lshr_b32 s13, s2, 3")
    a("s_lshl_b32 s12, s12, 2")
    a("s_lshr_b32 s14, s13, 3")
    a("s_add_u32 s12, s12, s14")
    a("s_and_b32 s13, s13, 7")
    a("s_cmp_ge_u32 s3, 4")
    a(f"s_cbranch_scc0 {name}_compute")
    a("s_sub_u32 s3, s3, 4")
    a("v_lshrrev_b32 v4, 3, v0")
    a("v_and_b32 v5, 7, v0")
    a("v_lshrrev_b32 v6, 4, v0")
    a("s_and_b32 s14, s3, 1")
    a("s_lshl_b32 s14, s14, 2")
    a("v_xor_b32 v7, v5, v6")
    a("v_xor_b32 v7, s14, v7")
    a("v_lshlrev_b32 v7, 4, v7")
    a(f"v_mul_u32_u24 v2, {XSTR}, v4")
    a("v_add_u32 v2, v2, v7")
    a("v_and_b32 v6, 1, v6")
    a("v_lshlrev_b32 v6, 2, v6")
    a("v_xor_b32 v7, v5, v6")
    a("v_lshlrev_b32 v7, 4, v7")
    a("v_lshl_add_u32 v3, v4, 10, v7")
    a("s_lshl_b32 s20, s12, 3")
    a("s_add_u32 s20, s20, s3")
    a(f"s_mul_i32 s20, s20, {8*XSTR}")
    a("s_lshl_b32 s21, s3, 13")
    a("s_lshl_b32 s22, s13, 7")
    a("s_add_u32 s21, s21, s22")
    a("s_lshl_b32 s22, s3, 10")
    a("s_waitcnt lgkmcnt(0)")
    srd(a, 24, 8, XSIZE, XOFF)
    srd(a, 28, 6, WSIZE)
    def issue(c):
        st = (c % NS) * STAGE
        for jj in range(2):
            dma(a, 2, 24, (20, c * 128 + jj * 32 * XSTR, 23), (22, st + jj * 4096))
        for jj in range(2):
            dma(a, 3, 28, (21, c * 64 * 1024 + jj * 32 * 1024, 23), (22, st + 8192 + jj * 4096))
    loader_schedule(a, NC, NS, 4, issue)
    a("s_endpgm")
    a.label(f"{name}_compute")
    V = Alloc(1, 256)
    acc = V.alloc(16, 4)
    XF = [V.alloc(4, 4) for _ in range(2)]
    WF = [V.alloc(4, 4) for _ in range(2)]
    RES = V.alloc(8, 4)
    xa = [V.alloc() for _ in range(4)]
    wa = V.alloc()
    t = [V.alloc() for _ in range(8)]
    a("s_and_b32 s14, s3, 1")
    a("s_lshr_b32 s15, s3, 1")
    a(f"v_and_b32 v{t[0]}, 31, v0")
    a(f"v_lshrrev_b32 v{t[1]}, 5, v0")
    a(f"v_bfe_u32 v{t[2]}, v0, 1, 3")
    a(f"v_xor_b32 v{t[2]}, v{t[2]}, v{t[1]}")
    a(f"v_lshlrev_b32 v{t[2]}, 4, v{t[2]}")
    a(f"s_lshl_b32 s16, s14, 12")
    a(f"v_lshl_add_u32 v{t[3]}, v{t[0]}, 7, v{t[2]}")
    a(f"v_add_u32 v{xa[0]}, s16, v{t[3]}")
    for s in range(1, 4):
        a(f"v_xor_b32 v{xa[s]}, {s*32}, v{xa[0]}")
    a(f"v_bfe_u32 v{t[2]}, v0, 2, 2")
    a(f"v_lshl_add_u32 v{t[3]}, v{t[1]}, {2 if perm else 3}, v{t[2]}")
    a(f"v_bfe_u32 v{t[4]}, v0, 4, 1")
    a(f"v_bfe_u32 v{t[5]}, v0, 1, 1")
    a(f"v_lshl_add_u32 v{t[4]}, v{t[4]}, 1, v{t[5]}")
    a(f"s_lshl_b32 s16, s15, 2")
    a(f"v_add_u32 v{t[4]}, s16, v{t[4]}")
    a(f"v_bfe_u32 v{t[5]}, v0, 3, 1")
    a(f"v_lshlrev_b32 v{t[5]}, 2, v{t[5]}")
    a(f"v_xor_b32 v{t[4]}, v{t[4]}, v{t[5]}")
    a(f"v_lshlrev_b32 v{t[4]}, 4, v{t[4]}")
    a(f"v_lshl_add_u32 v{t[4]}, v{t[3]}, 7, v{t[4]}")
    a(f"v_and_b32 v{t[5]}, 1, v0")
    a(f"v_lshl_add_u32 v{wa}, v{t[5]}, 3, v{t[4]}")
    toff = 1024 if perm else 512
    for i in range(16): a(f"v_mov_b32 v{acc+i}, 0")
    a("s_waitcnt lgkmcnt(0)")
    tokoff = t[6]
    if which == 3:
        srd(a, 24, 4, 2048 * 1024)
        a(f"v_lshlrev_b32 v{tokoff}, 10, v{t[0]}")
        a(f"v_lshl_add_u32 v{tokoff}, v{t[1]}, 3, v{tokoff}")
        a("s_lshl_b32 s20, s12, 16")
        a("s_lshl_b32 s21, s14, 15")
        a("s_add_u32 s20, s20, s21")
        a("s_lshl_b32 s21, s13, 7")
        a("s_add_u32 s20, s20, s21")
        a("s_lshl_b32 s21, s15, 6")
        a("s_add_u32 s20, s20, s21")
        for g in range(4):
            a(f"buffer_load_dwordx2 {vr(RES+2*g,2)}, v{tokoff}, s[24:27], s20 offen offset:{g*16}")
    else:
        srd(a, 24, 8, 0x200000, WS_H)
        a(f"v_lshlrev_b32 v{tokoff}, 10, v{t[0]}")
        a(f"v_lshl_add_u32 v{tokoff}, v{t[1]}, 4, v{tokoff}")
        a("s_lshl_b32 s20, s12, 16")
        a("s_lshl_b32 s21, s14, 15")
        a("s_add_u32 s20, s20, s21")
        a("s_lshl_b32 s21, s13, 7")
        a("s_add_u32 s20, s20, s21")
        a("s_lshl_b32 s21, s15, 6")
        a("s_add_u32 s20, s20, s21")
        for g2 in range(2):
            a(f"buffer_load_dwordx4 {vr(RES+4*g2,4)}, v{tokoff}, s[24:27], s20 offen offset:{g2*32}")
    a("s_mov_b32 s17, 0")
    a("s_mov_b32 s18, 0")
    def reads(setn, s):
        a(f"ds_read_b128 {vr(XF[setn],4)}, v{xa[s]}")
        for tt in range(2):
            a(f"ds_read_b64_tr_b16 {vr(WF[setn]+2*tt,2)}, v{wa} offset:{8192+s*2048+tt*toff}")
    a("s_barrier")
    reads(0, 0)
    a.label(f"{name}_loop")
    last_half = (NK16 % 4 == 2)
    for s in range(4):
        cur = s & 1; nxt = cur ^ 1
        a("s_waitcnt lgkmcnt(0)")
        if s == 1 and last_half:
            a(f"s_cmp_eq_u32 s17, {NC-1}")
            a(f"s_cbranch_scc1 {name}_fin")
        if s < 3:
            reads(nxt, s + 1)
        else:
            if not last_half:
                a(f"s_cmp_eq_u32 s17, {NC-1}")
                a(f"s_cbranch_scc1 {name}_noread")
            a("s_barrier")
            a(f"s_add_u32 s19, s18, {STAGE}")
            a(f"s_cmp_eq_u32 s19, {NS*STAGE}")
            a(f"s_cselect_b32 s19, 0, s19")
            a(f"s_sub_u32 s16, s19, s18")
            a(f"s_mov_b32 s18, s19")
            for r in xa + [wa]:
                a(f"v_add_u32 v{r}, s16, v{r}")
            reads(nxt, 0)
            if not last_half:
                a.label(f"{name}_noread")
        a(f"v_mfma_f32_32x32x16_bf16 {vr(acc,16)}, {vr(WF[cur],4)}, {vr(XF[cur],4)}, {vr(acc,16)}")
    a("s_add_u32 s17, s17, 1")
    a(f"s_cmp_lt_u32 s17, {NC}")
    a(f"s_cbranch_scc1 {name}_loop")
    if last_half:
        a(f"s_branch {name}_epi")
        a.label(f"{name}_fin")
        a(f"v_mfma_f32_32x32x16_bf16 {vr(acc,16)}, {vr(WF[1],4)}, {vr(XF[1],4)}, {vr(acc,16)}")
        a.label(f"{name}_epi")
    a("s_waitcnt vmcnt(0)")
    U = V.alloc(16, 4)
    for j in range(8):
        a(f"v_lshlrev_b32 v{U+2*j}, 16, v{RES+j}")
        a(f"v_and_b32 v{U+2*j+1}, 0xffff0000, v{RES+j}")
    a("s_nop 4")
    for i in range(0, 16, 2):
        a(f"v_pk_add_f32 {vr(U+i,2)}, {vr(U+i,2)}, {vr(acc+i,2)}")
    for j in range(8):
        a(f"v_cvt_pk_bf16_f32 v{RES+j}, v{U+2*j}, v{U+2*j+1}")
    if which == 3:
        srd(a, 24, 8, 0x200000, WS_H)
        a(f"v_lshlrev_b32 v{tokoff}, 10, v{t[0]}")
        a(f"v_lshl_add_u32 v{tokoff}, v{t[1]}, 4, v{tokoff}")
        for g2 in range(2):
            a(f"buffer_store_dwordx4 {vr(RES+4*g2,4)}, v{tokoff}, s[24:27], s20 offen offset:{g2*32}")
    else:
        a("s_nop 1")
        for g2 in range(2):
            a(f"v_permlane32_swap_b32 v{RES+4*g2}, v{RES+4*g2+2}")
            a(f"v_permlane32_swap_b32 v{RES+4*g2+1}, v{RES+4*g2+3}")
        srd(a, 24, 10, 0x200000)
        for g2 in range(2):
            a(f"buffer_store_dwordx4 {vr(RES+4*g2,4)}, v{tokoff}, s[24:27], s20 offen offset:{g2*32}")
    a(f"{name}_done:")
    a("s_endpgm")
    return a, dict(vgpr=V.hi, sgpr=40, block=512, lds=LDS, grid=256)

def gen_k4(name):
    a = Asm()
    NC, NS = 8, 3
    WG_OFF = 16384; WU_OFF = 16384 + 12288 + 32
    STAGE = 41216
    SCR = NS * STAGE
    LDS = SCR + 8192
    a.raw(kernel_header(name))
    a("s_cmp_ge_u32 s2, 256")
    a(f"s_cbranch_scc1 {name}_done")
    a("s_load_dwordx4 s[4:7], s[0:1], 32")
    a("s_load_dwordx2 s[8:9], s[0:1], 72")
    a("v_lshrrev_b32 v1, 6, v0")
    a("v_and_b32 v0, 63, v0")
    a("v_readfirstlane_b32 s3, v1")
    a("s_and_b32 s10, s2, 7")
    a("s_lshr_b32 s11, s2, 3")
    a("s_lshr_b32 s12, s10, 1")
    a("s_lshl_b32 s12, s12, 2")
    a("s_and_b32 s14, s11, 3")
    a("s_add_u32 s12, s12, s14")
    a("s_and_b32 s13, s10, 1")
    a("s_lshl_b32 s13, s13, 3")
    a("s_lshr_b32 s14, s11, 2")
    a("s_add_u32 s13, s13, s14")
    a("s_cmp_ge_u32 s13, 15")
    a(f"s_cbranch_scc1 {name}_done")
    a("s_cmp_ge_u32 s3, 8")
    a(f"s_cbranch_scc0 {name}_compute")
    a("s_sub_u32 s3, s3, 8")
    a("v_lshrrev_b32 v4, 3, v0")
    a("v_and_b32 v5, 7, v0")
    a("v_lshrrev_b32 v6, 4, v0")
    a("s_and_b32 s14, s3, 1")
    a("s_lshl_b32 s14, s14, 2")
    a("v_xor_b32 v7, v5, v6")
    a("v_xor_b32 v7, s14, v7")
    a("v_lshlrev_b32 v7, 4, v7")
    a("v_lshl_add_u32 v2, v4, 10, v7")
    a("s_lshl_b32 s14, s3, 6")
    a("s_mov_b32 s15, 0xAAAAAAAB")
    for n in range(3):
        a(f"v_add_u32 v8, s14, v0")
        a(f"v_add_u32 v8, {256*n}, v8")
        a(f"v_mul_hi_u32 v9, v8, s15")
        a(f"v_lshrrev_b32 v9, 3, v9")
        a(f"v_mul_u32_u24 v10, 12, v9")
        a(f"v_sub_u32 v10, v8, v10")
        a(f"v_mul_u32_u24 v9, 2752, v9")
        a(f"v_lshl_add_u32 v{11+n}, v10, 4, v9")
    a("s_lshl_b32 s20, s12, 17")
    a("s_lshl_b32 s21, s3, 13")
    a("s_add_u32 s20, s20, s21")
    a("s_mul_i32 s21, s13, 192")
    a("s_lshl_b32 s22, s3, 10")
    a("s_waitcnt lgkmcnt(0)")
    srd(a, 24, 8, 0x200000, WS_H)
    srd(a, 28, 4, 512 * 2752)
    srd(a, 32, 6, 512 * 2752)
    def issue(c):
        st = (c % NS) * STAGE
        for jj in range(4):
            dma(a, 2, 24, (20, c * 128 + jj * 32768, 23), (22, st + jj * 4096))
        for n in range(3):
            dma(a, 11 + n, 28, (21, c * 64 * 2752, 23), (22, st + WG_OFF + n * 4096))
        for n in range(3):
            dma(a, 11 + n, 32, (21, c * 64 * 2752, 23), (22, st + WU_OFF + n * 4096))
    loader_schedule(a, NC, NS, 10, issue)
    a("s_endpgm")
    a.label(f"{name}_compute")
    V = Alloc(1, 168)
    acc = [V.alloc(16, 4) for _ in range(3)]
    XF = [V.alloc(4, 4) for _ in range(2)]
    WF = [[V.alloc(4, 4) for _ in range(3)] for _ in range(2)]
    xa = [V.alloc() for _ in range(4)]
    wa = V.alloc()
    vsum = V.alloc(2, 2); vsq = vsum + 1
    cs = [V.alloc() for _ in range(3)]
    ones = V.alloc()
    t = [V.alloc() for _ in range(8)]
    a("s_and_b32 s14, s3, 3")
    a("s_lshr_b32 s15, s3, 2")
    a(f"v_and_b32 v{t[0]}, 31, v0")
    a(f"v_lshrrev_b32 v{t[1]}, 5, v0")
    a(f"v_bfe_u32 v{t[2]}, v0, 1, 3")
    a(f"v_xor_b32 v{t[2]}, v{t[2]}, v{t[1]}")
    a(f"v_lshlrev_b32 v{t[2]}, 4, v{t[2]}")
    a(f"s_lshl_b32 s16, s14, 12")
    a(f"v_lshl_add_u32 v{t[3]}, v{t[0]}, 7, v{t[2]}")
    a(f"v_add_u32 v{xa[0]}, s16, v{t[3]}")
    for s in range(1, 4):
        a(f"v_xor_b32 v{xa[s]}, {s*32}, v{xa[0]}")
    a(f"v_bfe_u32 v{t[2]}, v0, 2, 2")
    a(f"v_lshl_add_u32 v{t[3]}, v{t[1]}, 2, v{t[2]}")
    a(f"v_mul_u32_u24 v{t[3]}, 192, v{t[3]}")
    a(f"v_bfe_u32 v{t[4]}, v0, 4, 1")
    a(f"v_mul_u32_u24 v{t[4]}, {WU_OFF - WG_OFF}, v{t[4]}")
    a(f"v_add_u32 v{t[3]}, v{t[3]}, v{t[4]}")
    a(f"v_and_b32 v{t[4]}, 3, v0")
    a(f"v_lshl_add_u32 v{t[3]}, v{t[4]}, 3, v{t[3]}")
    a(f"s_mul_i32 s16, s15, 96")
    a(f"v_add_u32 v{wa}, s16, v{t[3]}")
    for r in range(3):
        for i in range(16): a(f"v_mov_b32 v{acc[r]+i}, 0")
    a(f"v_mov_b32 v{vsum}, 0")
    a(f"v_mov_b32 v{vsq}, 0")
    for r in range(3): a(f"v_mov_b32 v{cs[r]}, 0")
    a(f"v_mov_b32 v{ones}, 0x3f803f80")
    a("s_mov_b32 s17, 0")
    a("s_mov_b32 s18, 0")
    def reads(setn, s):
        a(f"ds_read_b128 {vr(XF[setn],4)}, v{xa[s]}")
        for bl in range(3):
            for tt in range(2):
                a(f"ds_read_b64_tr_b16 {vr(WF[setn][bl]+2*tt,2)}, v{wa} offset:{WG_OFF+s*3072+tt*1536+bl*32}")
    a("s_barrier")
    reads(0, 0)
    a.label(f"{name}_loop")
    for s in range(4):
        cur = s & 1; nxt = cur ^ 1
        a("s_waitcnt lgkmcnt(0)")
        if s < 3:
            reads(nxt, s + 1)
        else:
            a(f"s_cmp_eq_u32 s17, {NC-1}")
            a(f"s_cbranch_scc1 {name}_noread")
            a("s_barrier")
            a(f"s_add_u32 s19, s18, {STAGE}")
            a(f"s_cmp_eq_u32 s19, {NS*STAGE}")
            a(f"s_cselect_b32 s19, 0, s19")
            a(f"s_sub_u32 s16, s19, s18")
            a(f"s_mov_b32 s18, s19")
            for r in xa + [wa]:
                a(f"v_add_u32 v{r}, s16, v{r}")
            reads(nxt, 0)
            a.label(f"{name}_noread")
        lx = a.uid(name + "_sx"); lc = a.uid(name + "_sc")
        a(f"s_cmp_eq_u32 s15, {s&1}")
        a(f"s_cbranch_scc0 {lx}")
        for i in range(4):
            a(f"v_dot2c_f32_bf16 v{vsum}, v{XF[cur]+i}, v{ones}")
            a(f"v_dot2c_f32_bf16 v{vsq}, v{XF[cur]+i}, v{XF[cur]+i}")
        a.label(lx)
        a(f"s_cmp_eq_u32 s14, {s}")
        a(f"s_cbranch_scc0 {lc}")
        for bl in range(3):
            for i in range(4):
                a(f"v_dot2c_f32_bf16 v{cs[bl]}, v{WF[cur][bl]+i}, v{ones}")
        a.label(lc)
        for bl in range(3):
            a(f"v_mfma_f32_32x32x16_bf16 {vr(acc[bl],16)}, {vr(WF[cur][bl],4)}, {vr(XF[cur],4)}, {vr(acc[bl],16)}")
    a("s_add_u32 s17, s17, 1")
    a(f"s_cmp_lt_u32 s17, {NC}")
    a(f"s_cbranch_scc1 {name}_loop")
    for r in (vsum, vsq, cs[0], cs[1], cs[2]):
        xhalf_reduce(a, r, t[7])
    a(f"v_and_b32 v{t[0]}, 31, v0")
    a(f"s_lshl_b32 s16, s3, 8")
    a(f"s_add_u32 s16, s16, {SCR}")
    a(f"v_lshl_add_u32 v{t[2]}, v{t[0]}, 3, s16")
    a(f"ds_write_b64 v{t[2]}, {vr(vsum,2)}")
    a(f"s_mul_i32 s16, s3, 384")
    a(f"s_add_u32 s16, s16, {SCR+2048}")
    a(f"v_lshl_add_u32 v{t[3]}, v{t[0]}, 2, s16")
    for bl in range(3):
        a(f"ds_write_b32 v{t[3]}, v{cs[bl]} offset:{bl*128}")
    a("s_waitcnt lgkmcnt(0)")
    a("s_barrier")
    a(f"s_xor_b32 s16, s3, 4")
    a(f"s_lshl_b32 s16, s16, 8")
    a(f"s_add_u32 s16, s16, {SCR}")
    a(f"v_lshl_add_u32 v{t[2]}, v{t[0]}, 3, s16")
    p2 = XF[0]
    a(f"ds_read_b64 {vr(p2,2)}, v{t[2]}")
    a(f"s_mul_i32 s16, s15, {4*384}")
    a(f"s_add_u32 s16, s16, {SCR+2048}")
    a(f"v_lshl_add_u32 v{t[4]}, v{t[0]}, 2, s16")
    pc = WF[0][0]
    for w in range(4):
        for bl in range(3):
            a(f"ds_read_b32 v{pc+w*3+bl}, v{t[4]} offset:{w*384+bl*128}")
    a("s_waitcnt lgkmcnt(0)")
    a(f"v_add_f32 v{vsum}, v{vsum}, v{p2}")
    a(f"v_add_f32 v{vsq}, v{vsq}, v{p2+1}")
    for bl in range(3):
        a(f"v_add_f32 v{cs[bl]}, v{pc+bl}, v{pc+3+bl}")
        a(f"v_add_f32 v{pc+6+bl}, v{pc+6+bl}, v{pc+9+bl}")
        a(f"v_add_f32 v{cs[bl]}, v{cs[bl]}, v{pc+6+bl}")
    a(f"s_mul_i32 s16, s3, 384")
    a(f"s_add_u32 s16, s16, {SCR+5120}")
    a(f"v_lshl_add_u32 v{t[3]}, v{t[0]}, 2, s16")
    for bl in range(3):
        a(f"ds_write_b32 v{t[3]}, v{cs[bl]} offset:{bl*128}")
    va = V.alloc(2, 2); vb = V.alloc(2, 2)
    ln_finalize(a, vsum, vsq, va, vb, t[5], t[6])
    a(f"v_lshrrev_b32 v{t[1]}, 5, v0")
    a(f"v_lshl_add_u32 v{t[4]}, v{t[1]}, 4, s16")
    CT = V.alloc(16, 4)
    T1 = V.alloc(8, 4); T2 = V.alloc(8, 4)
    PK = V.alloc(4, 4)
    kc = V.alloc(4, 2)
    C0 = -2.0 * math.sqrt(2.0 / math.pi) * math.log2(math.e)
    C1 = C0 * 0.044715
    a(f"v_mov_b32 v{kc}, {hexf(C0)}")
    a(f"v_mov_b32 v{kc+2}, {hexf(C1)}")
    one2 = V.alloc(2, 2)
    a(f"v_mov_b32 v{one2}, 1.0")
    a(f"v_mul_u32_u24 v{t[5]}, {GSTRIDE}, v{t[0]}")
    a(f"v_lshl_add_u32 v{t[5]}, v{t[1]}, 4, v{t[5]}")
    srd(a, 24, 8, 2048 * GSTRIDE, WS_G)
    a("s_lshl_b32 s20, s12, 2")
    a("s_add_u32 s20, s20, s14")
    a(f"s_mul_i32 s20, s20, {32*GSTRIDE}")
    a("s_mul_i32 s21, s13, 192")
    a("s_add_u32 s20, s20, s21")
    a("s_mul_i32 s21, s15, 96")
    a("s_add_u32 s20, s20, s21")
    a("s_mul_i32 s22, s13, 96")
    a("s_mul_i32 s23, s15, 48")
    a("s_add_u32 s22, s22, s23")
    a("s_waitcnt lgkmcnt(0)")
    for bl in range(3):
        for g in range(4):
            a(f"ds_read_b128 {vr(CT+4*g,4)}, v{t[4]} offset:{bl*128+g*32}")
        a("s_waitcnt lgkmcnt(0)")
        A = acc[bl]
        for i in range(0, 16, 2):
            a(f"v_pk_mul_f32 {vr(CT+i,2)}, {vr(CT+i,2)}, {vr(vb,2)} op_sel_hi:[1,0]")
        for i in range(0, 16, 2):
            a(f"v_pk_fma_f32 {vr(A+i,2)}, {vr(A+i,2)}, {vr(va,2)}, {vr(CT+i,2)} op_sel_hi:[1,0,1]")
        for i in range(0, 8, 2):
            a(f"v_pk_mul_f32 {vr(T1+i,2)}, {vr(A+i,2)}, {vr(A+i,2)}")
        for i in range(0, 8, 2):
            a(f"v_pk_fma_f32 {vr(T1+i,2)}, {vr(T1+i,2)}, {vr(kc+2,2)}, {vr(kc,2)} op_sel_hi:[1,0,0]")
        for i in range(0, 8, 2):
            a(f"v_pk_mul_f32 {vr(T1+i,2)}, {vr(T1+i,2)}, {vr(A+i,2)}")
        for i in range(8):
            a(f"v_exp_f32 v{T1+i}, v{T1+i}")
        for i in range(0, 8, 2):
            a(f"v_pk_mul_f32 {vr(T2+i,2)}, {vr(A+i,2)}, {vr(A+8+i,2)}")
        for i in range(0, 8, 2):
            a(f"v_pk_add_f32 {vr(T1+i,2)}, {vr(T1+i,2)}, {vr(one2,2)} op_sel_hi:[1,0]")
        for i in range(8):
            a(f"v_rcp_f32 v{T1+i}, v{T1+i}")
        a("s_nop 0")
        for i in range(0, 8, 2):
            a(f"v_pk_mul_f32 {vr(T2+i,2)}, {vr(T2+i,2)}, {vr(T1+i,2)}")
        for i in range(4):
            a(f"v_cvt_pk_bf16_f32 v{PK+i}, v{T2+2*i}, v{T2+2*i+1}")
        lab = a.uid(name + "_nost")
        a(f"s_add_u32 s23, s22, {bl*16}")
        a(f"s_cmp_ge_u32 s23, 1376")
        a(f"s_cbranch_scc1 {lab}")
        a(f"buffer_store_dwordx4 {vr(PK,4)}, v{t[5]}, s[24:27], s20 offen offset:{bl*32}")
        a.label(lab)
    a(f"{name}_done:")
    a("s_endpgm")
    return a, dict(vgpr=V.hi, sgpr=40, block=768, lds=LDS, grid=256)

def build(out_path, kernels=None):
    ks = [("k1_qkv_kernel", gen_k1), ("k2_attn_kernel", gen_k2), ("k3_wo_kernel", lambda n: gen_k35(n, 3)),
          ("k4_ffn1_kernel", gen_k4), ("k5_ffn2_kernel", lambda n: gen_k35(n, 5))]
    hdr = open("cdna_kernels/" + NAME + ".s.ref").read().split("; Override launch")[0]
    launches = []; bodies = []; descs = []
    for nm, fn in ks:
        a, info = fn(nm)
        log = []
        lines = hazard.fix(a.lines, log=log)
        probs = hazard.check_loops(lines)
        for p in probs: print("HAZARD", nm, p)
        print(f"{nm}: vgpr={info['vgpr']} lds={info['lds']} nops inserted={len(log)} lines={len(lines)}")
        if "-v" in sys.argv:
            for l in log: print("   nop:", l)
        launches.append(f"; @launch kernel={nm} grid=({info['grid']},1,1) block=({info['block']},1,1) lds={info['lds']}")
        bodies.append("\n".join(lines))
        descs.append(".p2align 6\n" + kernel_desc(nm, info['vgpr'], info['sgpr']))
    s = hdr + "\n".join(launches) + "\n.amdgcn_target \"amdgcn-amd-amdhsa--gfx950\"\n.text\n" + "\n".join(bodies) + "\n.section .rodata,\"a\"\n" + "".join(descs)
    open(out_path, "w").write(s)

if __name__ == "__main__":
    build(sys.argv[1] if len(sys.argv) > 1 and not sys.argv[1].startswith("-") else "out.s")
```
